```python
import torch

def _softmax(x, axis=-1):
    return torch.softmax(x, dim=axis)
def _gelu(x):
    return torch.nn.functional.gelu(x, approximate="tanh")
def _silu(x):
    return torch.nn.functional.silu(x)
def _sigmoid(x):
    return torch.sigmoid(x)
def _layernorm(x, axis=-1, eps=1e-5):
    m = x.mean(dim=axis, keepdim=True)
    v = x.var(dim=axis, keepdim=True, unbiased=False)
    return (x - m) / torch.sqrt(v + eps)
def _scatter_add(tgt, idx, src, axis=0):
    return tgt.clone().index_add_(axis, idx, src)
def _segment_sum(src, seg, n):
    out = torch.zeros((n,) + src.shape[1:], dtype=src.dtype)
    return out.index_add_(0, seg, src)
def _pad(x, pw):
    flat = tuple(v for pair in reversed(pw) for v in pair)
    return torch.nn.functional.pad(x, flat)

kernel_name = 'standalone__low_rank_proj_linformer__sampling'

def setup_inputs():

    _w = (lambda a: (lambda t: t.to(torch.bfloat16) if t.is_floating_point() else t)(torch.as_tensor(a)))
    B, H, Sq, Skv, Dh, R = 8, 32, 4, 2048, 128, 64
    return {
        "q": _w((lambda *s: torch.randn(*s, dtype=torch.bfloat16) * 0.8)(B, H, Sq, Dh)),
        "k": _w((lambda *s: torch.randn(*s, dtype=torch.bfloat16) * 0.8)(B, H, Skv, Dh)),
        "v": _w((lambda *s: torch.randn(*s, dtype=torch.bfloat16) * 0.05)(B, H, Skv, Dh)),
        "e_proj": _w((lambda *s: torch.randn(*s, dtype=torch.bfloat16) * 0.8)(R, Skv) * (Skv ** -0.5)),
        "f_proj": _w((lambda *s: torch.randn(*s, dtype=torch.bfloat16) * 0.05)(R, Skv) * (Skv ** -0.5)),
    }

def reference(q, k, v, e_proj, f_proj):
    B, H, Sq, Dh = q.shape
    kp = torch.einsum("rn,bhnd->bhrd", e_proj, k)
    vp = torch.einsum("rn,bhnd->bhrd", f_proj, v)
    scores = torch.einsum("bhqd,bhrd->bhqr", q, kp) * (Dh ** -0.5)
    p = _softmax(scores, axis=-1)
    o = torch.einsum("bhqr,bhrd->bhqd", p, vp)
    return o
```

```python
import sys
KN = "standalone__low_rank_proj_linformer__sampling_kernel"

HEADER = """; Kernarg layout for this problem (64 bytes, ptrs only, base s[0:1]):
"""

class G:
    def __init__(self):
        self.L = []
        self.vm = 0
        self.nv = 1
    def A(self, s): self.L.append("    " + s)
    def C(self, s): self.L.append("    ; " + s)
    def valloc(self, n, align=1):
        b = (self.nv + align - 1) // align * align
        self.nv = b + n
        return b
    def vmem(self, s):
        self.A(s); self.vm += 1
    def wait_vm(self, end_idx):
        n = self.vm - end_idx
        assert 0 <= n <= 63, n
        self.A(f"s_waitcnt vmcnt({n})")

def vr(b, n): return f"v[{b}:{b+n-1}]"

def gen(NS=3, NWS=1, rot=0, kvflags="nt", efflags=""):
    NW = 4
    g = G(); A = g.A; C = g.C
    RW = (NWS + NS) * 8192
    SCR = NW * RW
    lds = SCR + 16384
    assert lds <= 160 * 1024
    vK = g.valloc(4); vV = g.valloc(4); vE = g.valloc(8); vF = g.valloc(8)
    aK = g.valloc(4); aE = g.valloc(2); aF = g.valloc(4); aV = g.valloc(8)
    t0 = g.valloc(8)
    QF = g.valloc(16, 4); WF = g.valloc(32, 4); UF = g.valloc(32, 4)
    SD = g.valloc(16, 4)
    PB = g.valloc(8, 4)
    SC = g.valloc(16, 4); P = g.valloc(8, 4); O = g.valloc(32, 4)
    sK, sV, sE, sF, sQ, sO = 24, 28, 32, 36, 40, 44
    sWave, sLB, sU, sW = 20, 21, 22, 23

    g.L.append(HEADER.rstrip())
    g.L.append(f"; @launch grid=(256,1,1) block=(256,1,1) lds={lds}")
    g.L.append('.amdgcn_target "amdgcn-amd-amdhsa--gfx950"')
    g.L += [".text", f".globl {KN}", ".p2align 8", f".type {KN},@function", f"{KN}:"]
    A("s_cmp_ge_u32 s2, 256")
    A("s_cbranch_scc1 L_done")
    A("s_load_dwordx16 s[4:19], s[0:1], 0")
    A(f"v_lshrrev_b32 v{t0}, 6, v0")
    A("v_and_b32 v0, 63, v0")
    A(f"v_lshrrev_b32 v{t0+1}, 4, v0")
    A(f"v_readfirstlane_b32 s{sWave}, v{t0}")
    A(f"v_and_b32 v{t0+2}, 15, v0")
    A(f"v_xor_b32 v{t0+3}, v{t0+2}, v{t0+1}")
    A(f"v_lshlrev_b32 v{t0+4}, 8, v{t0+1}")
    A(f"v_lshl_add_u32 v{vK}, v{t0+3}, 4, v{t0+4}")
    A(f"v_xor_b32 v{vK+1}, 64, v{vK}")
    A(f"v_xor_b32 v{vK+2}, 0x1080, v{vK}")
    A(f"v_xor_b32 v{vK+3}, 0x10c0, v{vK}")
    A(f"s_mul_i32 s{sLB}, s{sWave}, {RW}")
    if rot:
        A(f"s_mul_i32 s{sU}, s2, {rot*4}")
        A(f"s_add_u32 s{sU}, s{sU}, s{sWave}")
        A(f"s_and_b32 s{sU}, s{sU}, 31")
    else:
        A(f"s_mov_b32 s{sU}, s{sWave}")
    A(f"s_lshl_b32 s{sW}, s{sU}, 7")
    A(f"s_lshl_b32 s{sU}, s{sU}, 14")
    A("s_lshl_b32 s48, s2, 19")
    A("s_lshr_b32 s49, s2, 13")
    A(f"s_mov_b32 s{sK+2}, 0x80000"); A(f"s_mov_b32 s{sK+3}, 0x20000")
    A(f"s_mov_b32 s{sV+2}, 0x80000"); A(f"s_mov_b32 s{sV+3}, 0x20000")
    A(f"s_mov_b32 s{sE+2}, 0x40000"); A(f"s_mov_b32 s{sE+3}, 0x20000")
    A(f"s_mov_b32 s{sF+2}, 0x40000"); A(f"s_mov_b32 s{sF+3}, 0x20000")
    A(f"s_mov_b32 s{sQ+2}, 1024"); A(f"s_mov_b32 s{sQ+3}, 0x20000")
    A(f"s_mov_b32 s{sO+2}, 1024"); A(f"s_mov_b32 s{sO+3}, 0x20000")
    A("s_lshl_b32 s50, s2, 10")
    A(f"v_lshrrev_b32 v{t0+5}, 3, v0")
    A(f"v_and_b32 v{t0+6}, 7, v0")
    A(f"v_xor_b32 v{t0+7}, v{t0+6}, v{t0+1}")
    A(f"v_lshlrev_b32 v{t0+4}, 12, v{t0+5}")
    A(f"v_lshl_add_u32 v{vE}, v{t0+7}, 4, v{t0+4}")
    A(f"v_xor_b32 v{t0+7}, 64, v{vE}")
    for u in range(1, 8):
        src = vE if u % 2 == 0 else t0 + 7
        A(f"v_add_u32 v{vE+u}, {u*32768 - (u&3)*1024}, v{src}")
    A("s_waitcnt lgkmcnt(0)")
    A(f"s_add_u32 s{sK}, s6, s48"); A(f"s_addc_u32 s{sK+1}, s7, s49")

    units = [("K", b, s) for b in range(8) for s in range(2)] + [("V", b, s) for b in range(8) for s in range(2)]
    wts = [("E", b) for b in range(8)] + [("F", b) for b in range(8)]
    uend = {}; uhalf = {}; wend = {}
    st = dict(u=0, w=0)
    def uslot(i): return NWS * 8192 + (i % NS) * 8192
    def wslot(i): return (i % NWS) * 8192
    def issue_unit():
        i = st["u"]
        if i >= len(units): return False
        st["u"] += 1
        kind, b, s = units[i]
        srd = sK if kind == "K" else sV
        for u in range(8):
            if u % 4 == 0:
                A(f"s_add_u32 m0, s{sLB}, {uslot(i) + (u//4)*4096}")
                A("s_nop 0")
            vo = vK + (u >> 1) if kind == "K" else vV + 2 * (u >> 2) + (u & 1)
            g.vmem(f"buffer_load_dwordx4 v{vo}, s[{srd}:{srd+3}], s{sU} offen offset:{(u&3)*1024} {kvflags} lds")
            if u == 3: uhalf[i] = g.vm
        uend[i] = g.vm
        A(f"s_add_u32 s{sU}, s{sU}, {8192 if s == 0 else 65536 - 8192}")
        if s == 1: A(f"s_and_b32 s{sU}, s{sU}, 0x7ffff")
        return True
    def issue_w():
        i = st["w"]
        if i >= len(wts): return False
        st["w"] += 1
        kind, b = wts[i]
        srd = sE if kind == "E" else sF
        for u in range(8):
            if u % 4 == 0:
                A(f"s_add_u32 m0, s{sLB}, {wslot(i) + (u//4)*4096}")
                A("s_nop 0")
            vo = (vE if kind == "E" else vF) + u
            g.vmem(f"buffer_load_dwordx4 v{vo}, s[{srd}:{srd+3}], s{sW} offen offset:{(u&3)*1024} {efflags} lds")
        wend[i] = g.vm
        A(f"s_add_u32 s{sW}, s{sW}, 512")
        A(f"s_and_b32 s{sW}, s{sW}, 0xfff")
        return True

    C("initial fill")
    issue_unit()
    A(f"s_mov_b32 s{sE}, s10"); A(f"s_mov_b32 s{sE+1}, s11")
    A(f"s_add_u32 s{sQ}, s4, s50"); A(f"s_addc_u32 s{sQ+1}, s5, 0")
    A(f"v_lshlrev_b32 v{t0+4}, 8, v{t0+2}")
    A(f"v_lshl_add_u32 v{t0+4}, v{t0+1}, 4, v{t0+4}")
    for m in range(4):
        g.vmem(f"buffer_load_dwordx4 {vr(QF+4*m,4)}, v{t0+4}, s[{sQ}:{sQ+3}], 0 offen offset:{m*64}")
    for _ in range(NWS): issue_w()
    for _ in range(NS - 1): issue_unit()
    A(f"s_add_u32 s{sV}, s8, s48"); A(f"s_addc_u32 s{sV+1}, s9, s49")
    A(f"s_mov_b32 s{sF}, s12"); A(f"s_mov_b32 s{sF+1}, s13")
    A(f"s_add_u32 s{sO}, s14, s50"); A(f"s_addc_u32 s{sO+1}, s15, 0")
    C("address registers")
    A(f"v_and_b32 v{t0+4}, 12, v{t0+2}")
    A(f"v_add_u32 v{t0+4}, v{t0+4}, v{t0+2}")
    A(f"v_lshlrev_b32 v{t0+4}, 8, v{t0+4}")
    A(f"v_lshl_add_u32 v{t0+4}, v{t0+3}, 4, v{t0+4}")
    A(f"v_add_u32 v{aK}, s{sLB}, v{t0+4}")
    for m in range(1, 4): A(f"v_xor_b32 v{aK+m}, {m*64}, v{aK}")
    A(f"v_lshrrev_b32 v{t0+4}, 1, v{t0+2}")
    A(f"v_xor_b32 v{t0+4}, v{t0+4}, v{t0+1}")
    A(f"v_lshlrev_b32 v{t0+7}, 7, v{t0+2}")
    A(f"v_lshl_add_u32 v{t0+4}, v{t0+4}, 4, v{t0+7}")
    A(f"v_add_u32 v{aE}, s{sLB}, v{t0+4}")
    A(f"v_xor_b32 v{aE+1}, 64, v{aE}")
    A(f"v_lshlrev_b32 v{t0+4}, 1, v{t0+1}")
    A(f"v_xor_b32 v{t0+4}, v{t0+4}, v{t0+2}")
    A(f"v_lshlrev_b32 v{t0+7}, 8, v{t0+1}")
    A(f"v_lshl_add_u32 v{vV}, v{t0+4}, 4, v{t0+7}")
    A(f"v_xor_b32 v{vV+1}, 0x80, v{vV}")
    A(f"v_xor_b32 v{vV+2}, 0x1000, v{vV}")
    A(f"v_xor_b32 v{vV+3}, 0x1080, v{vV}")
    A(f"v_and_b32 v{t0+4}, 6, v{t0+5}")
    A(f"v_xor_b32 v{t0+4}, v{t0+4}, v{t0+6}")
    A(f"v_lshlrev_b32 v{t0+7}, 12, v{t0+5}")
    A(f"v_lshl_add_u32 v{vF}, v{t0+4}, 4, v{t0+7}")
    for u in range(1, 8): A(f"v_add_u32 v{vF+u}, {u*32768 - (u&3)*1024}, v{vF}")
    A(f"v_lshrrev_b32 v{t0+5}, 2, v0")
    A(f"v_bfe_u32 v{t0+6}, v0, 1, 1")
    A(f"v_and_b32 v{t0+4}, 6, v{t0+5}")
    A(f"v_or_b32 v{t0+4}, v{t0+4}, v{t0+6}")
    A(f"v_lshlrev_b32 v{t0+7}, 7, v{t0+5}")
    A(f"v_lshl_add_u32 v{t0+4}, v{t0+4}, 4, v{t0+7}")
    A(f"v_and_b32 v{t0+3}, 1, v0")
    A(f"v_lshl_add_u32 v{t0+4}, v{t0+3}, 3, v{t0+4}")
    A(f"v_add_u32 v{aF}, s{sLB}, v{t0+4}")
    for t in range(1, 4): A(f"v_xor_b32 v{aF+t}, {t*32}, v{aF}")
    A(f"v_and_b32 v{t0+4}, 7, v{t0+5}")
    A(f"v_lshl_or_b32 v{t0+4}, v{t0+4}, 1, v{t0+6}")
    A(f"v_lshlrev_b32 v{t0+7}, 8, v{t0+5}")
    A(f"v_lshl_add_u32 v{t0+4}, v{t0+4}, 4, v{t0+7}")
    A(f"v_lshl_add_u32 v{t0+4}, v{t0+3}, 3, v{t0+4}")
    A(f"v_add_u32 v{aV}, s{sLB}, v{t0+4}")
    for t in range(1, 8): A(f"v_xor_b32 v{aV+t}, {t*32}, v{aV}")

    MF = "v_mfma_f32_16x16x32_bf16"
    for b in range(8):
        C(f"K block {b}")
        wi = b
        g.wait_vm(wend[wi])
        for s in range(2):
            for rt in range(4):
                A(f"ds_read_b128 {vr(WF+(s*4+rt)*4,4)}, v{aE+s} offset:{wslot(wi)+rt*2048}")
        A("s_waitcnt lgkmcnt(0)")
        issue_w()
        for s in range(2):
            ui = 2 * b + s
            g.wait_vm(uend[ui])
            for h in range(2):
                for m in range(4):
                    A(f"ds_read_b128 {vr(UF+h*16+4*m,4)}, v{aK+m} offset:{uslot(ui)+h*1024}")
            for h in range(2):
                for m in range(4):
                    A(f"s_waitcnt lgkmcnt({7-(h*4+m)})")
                    c = "0" if m == 0 else vr(SD+4*h, 4)
                    A(f"{MF} {vr(SD+4*h,4)}, {vr(UF+h*16+4*m,4)}, {vr(QF+4*m,4)}, {c}")
            if not issue_unit(): pass
            A("s_nop 7")
            for j in range(4):
                A(f"v_cvt_pk_bf16_f32 v{PB+j}, v{SD+2*j}, v{SD+2*j+1}")
            A("s_nop 1")
            for rt in range(4):
                c = "0" if (b == 0 and s == 0) else vr(SC+4*rt, 4)
                A(f"{MF} {vr(SC+4*rt,4)}, {vr(WF+(s*4+rt)*4,4)}, {vr(PB,4)}, {c}")
    C("scores: cross-wave reduction")
    A(f"s_lshl_b32 s50, s{sWave}, 12")
    A(f"s_add_u32 s50, s50, {SCR}")
    A(f"v_lshlrev_b32 v{t0}, 4, v0")
    A(f"v_add_u32 v{t0+1}, s50, v{t0}")
    A(f"v_add_u32 v{t0}, {SCR}, v{t0}")
    A("s_nop 7")
    for rt in range(4):
        A(f"ds_write_b128 v{t0+1}, {vr(SC+4*rt,4)} offset:{rt*1024}")
    A("s_waitcnt lgkmcnt(0)")
    A("s_barrier")
    T = WF
    assert UF == WF + 32
    for w in range(4):
        for rt in range(4):
            A(f"ds_read_b128 {vr(T+w*16+rt*4,4)}, v{t0} offset:{w*4096+rt*1024}")
    A("s_waitcnt lgkmcnt(8)")
    for i in range(16): A(f"v_add_f32 v{T+i}, v{T+i}, v{T+16+i}")
    A("s_waitcnt lgkmcnt(0)")
    for i in range(16): A(f"v_add_f32 v{T+32+i}, v{T+32+i}, v{T+48+i}")
    for i in range(16): A(f"v_add_f32 v{T+i}, v{T+i}, v{T+32+i}")
    def round_bf16(base, tmp):
        for j in range(8): A(f"v_cvt_pk_bf16_f32 v{tmp+j}, v{base+2*j}, v{base+2*j+1}")
        for j in range(8):
            A(f"v_lshlrev_b32 v{base+2*j}, 16, v{tmp+j}")
            A(f"v_and_b32 v{base+2*j+1}, 0xffff0000, v{tmp+j}")
    round_bf16(T, T+16)
    A("s_mov_b32 s51, 0x3db504f3")
    for i in range(16): A(f"v_mul_f32 v{T+i}, s51, v{T+i}")
    round_bf16(T, T+16)
    M = T + 32
    A(f"v_max3_f32 v{M}, v{T}, v{T+1}, v{T+2}")
    for i in range(3, 15, 2): A(f"v_max3_f32 v{M}, v{M}, v{T+i}, v{T+i+1}")
    A(f"v_max_f32 v{M}, v{M}, v{T+15}")
    def xlane(op):
        for sw in ("v_permlane16_swap_b32", "v_permlane32_swap_b32"):
            A(f"v_mov_b32 v{M+1}, v{M}")
            A("s_nop 1")
            A(f"{sw} v{M}, v{M+1}")
            A("s_nop 1")
            A(f"{op} v{M}, v{M}, v{M+1}")
    xlane("v_max_f32")
    A("s_mov_b32 s51, 0x3fb8aa3b")
    for i in range(16): A(f"v_sub_f32 v{T+i}, v{T+i}, v{M}")
    for i in range(16): A(f"v_mul_f32 v{T+i}, s51, v{T+i}")
    for i in range(16): A(f"v_exp_f32 v{T+i}, v{T+i}")
    A("s_nop 0")
    A(f"v_add_f32 v{M}, v{T}, v{T+1}")
    for i in range(2, 16): A(f"v_add_f32 v{M}, v{M}, v{T+i}")
    xlane("v_add_f32")
    A(f"v_rcp_f32 v{M}, v{M}")
    A("s_nop 0")
    for i in range(16): A(f"v_mul_f32 v{T+i}, v{T+i}, v{M}")
    for j in range(8): A(f"v_cvt_pk_bf16_f32 v{P+j}, v{T+2*j}, v{T+2*j+1}")
    for b in range(8):
        C(f"V block {b}")
        wi = 8 + b
        g.wait_vm(wend[wi])
        for t in range(4):
            for rh in range(2):
                for hp in range(2):
                    A(f"ds_read_b64_tr_b16 {vr(WF+(t*2+rh)*4+2*hp,2)}, v{aF+t} offset:{wslot(wi)+(32*rh+16*hp)*128}")
        A("s_waitcnt lgkmcnt(0)")
        for t in range(4):
            A(f"{MF} {vr(SD+4*t,4)}, {vr(WF+(t*2)*4,4)}, {vr(P,4)}, 0")
            A(f"{MF} {vr(SD+4*t,4)}, {vr(WF+(t*2+1)*4,4)}, {vr(P+4,4)}, {vr(SD+4*t,4)}")
        issue_w()
        A("s_nop 7")
        for j in range(8):
            A(f"v_cvt_pk_bf16_f32 v{PB+j}, v{SD+2*j}, v{SD+2*j+1}")
        for s in range(2):
            ui = 16 + 2 * b + s
            g.wait_vm(uhalf[ui])
            for dt in range(8):
                A(f"ds_read_b64_tr_b16 {vr(UF+4*dt,2)}, v{aV+dt} offset:{uslot(ui)}")
            g.wait_vm(uend[ui])
            for dt in range(8):
                A(f"ds_read_b64_tr_b16 {vr(UF+4*dt+2,2)}, v{aV+dt} offset:{uslot(ui)+4096}")
            for dt in range(8):
                A(f"s_waitcnt lgkmcnt({7-dt})")
                c = "0" if (b == 0 and s == 0) else vr(O+4*dt, 4)
                A(f"{MF} {vr(O+4*dt,4)}, {vr(UF+4*dt,4)}, {vr(PB+4*s,4)}, {c}")
            issue_unit()
    C("output: cross-wave reduction")
    A(f"v_and_b32 v{t0}, 15, v0")
    A(f"v_lshlrev_b32 v{t0}, 9, v{t0}")
    A(f"v_and_b32 v{t0+1}, 48, v0")
    A(f"v_add3_u32 v{t0}, v{t0}, v{t0+1}, s{sLB}")
    A(f"s_lshl_b32 s51, s{sWave}, 6")
    A(f"v_add_u32 v{t0+2}, s51, v0")
    A(f"v_lshlrev_b32 v{t0+3}, 2, v{t0+2}")
    A(f"v_lshlrev_b32 v{t0+2}, 3, v{t0+2}")
    A(f"v_add_u32 v{t0+4}, {2*RW}, v{t0+2}")
    A("s_mov_b32 s52, 0x000f000f"); A("s_mov_b32 s53, 0x000f000f")
    A("s_nop 4")
    A("s_mov_b64 exec, s[52:53]")
    for dt in range(8):
        A(f"ds_write_b128 v{t0}, {vr(O+4*dt,4)} offset:{dt*64}")
    A("s_mov_b64 exec, -1")
    A("s_waitcnt lgkmcnt(0)")
    A("s_barrier")
    for w in range(4):
        A(f"ds_read_b64 {vr(UF+2*w,2)}, v{t0+2+2*(w>>1)} offset:{(w&1)*RW}")
    A("s_waitcnt lgkmcnt(0)")
    A(f"v_add_f32 v{UF}, v{UF}, v{UF+2}"); A(f"v_add_f32 v{UF+1}, v{UF+1}, v{UF+3}")
    A(f"v_add_f32 v{UF+4}, v{UF+4}, v{UF+6}"); A(f"v_add_f32 v{UF+5}, v{UF+5}, v{UF+7}")
    A(f"v_add_f32 v{UF}, v{UF}, v{UF+4}"); A(f"v_add_f32 v{UF+1}, v{UF+1}, v{UF+5}")
    A(f"v_cvt_pk_bf16_f32 v{UF}, v{UF}, v{UF+1}")
    g.vmem(f"buffer_store_dword v{UF}, v{t0+3}, s[{sO}:{sO+3}], 0 offen")
    g.L.append("L_done:")
    A("s_endpgm")
    nv = (g.nv + 3) // 4 * 4
    g.L += ['.section .rodata,"a"', ".p2align 6", f".amdhsa_kernel {KN}",
            f"  .amdhsa_next_free_vgpr {nv}", "  .amdhsa_next_free_sgpr 56", f"  .amdhsa_accum_offset {nv}",
            "  .amdhsa_group_segment_fixed_size 0", "  .amdhsa_kernarg_size 64", "  .amdhsa_user_sgpr_count 2",
            "  .amdhsa_user_sgpr_kernarg_segment_ptr 1", "  .amdhsa_system_sgpr_workgroup_id_x 1",
            "  .amdhsa_float_denorm_mode_32 3", ".end_amdhsa_kernel"]
    return "\n".join(g.L) + "\n", 256, 256, lds

if __name__ == "__main__":
    asm, *_ = gen()
    open("standalone__low_rank_proj_linformer__sampling.s", "w").write(asm)
```

```python
import sys
KN = "standalone__low_rank_proj_linformer__sampling_kernel"

HEADER = """; Kernarg layout for this problem (64 bytes, ptrs only, base s[0:1]):
"""

class G:
    def __init__(self):
        self.L = []
        self.vm = 0
        self.nv = 1
    def A(self, s): self.L.append("    " + s)
    def C(self, s): self.L.append("    ; " + s)
    def valloc(self, n, align=1):
        b = (self.nv + align - 1) // align * align
        self.nv = b + n
        return b
    def vmem(self, s):
        self.A(s); self.vm += 1
    def wait_vm(self, end_idx):
        n = self.vm - end_idx
        assert 0 <= n <= 63, n
        self.A(f"s_waitcnt vmcnt({n})")

def vr(b, n): return f"v[{b}:{b+n-1}]"

def gen(NS=3, NWS=1, rot=0, kvflags="nt", efflags="", stamp=0, compute=1, ef=1, swz=1, swap=1, vflags=None, stflags=""):
    NW = 4
    g = G(); A = g.A; C = g.C
    RW = (NWS + NS) * 8192
    SCR = NW * RW
    lds = SCR + 16384
    assert lds <= 160 * 1024
    vK = g.valloc(4); vV = g.valloc(4); vE = g.valloc(8); vF = g.valloc(8)
    aK = g.valloc(4); aE = g.valloc(2); aF = g.valloc(4); aV = g.valloc(8)
    t0 = g.valloc(8)
    QF = g.valloc(16, 4); WF = g.valloc(32, 4); UF = g.valloc(32, 4)
    SD = g.valloc(16, 4)
    PB = g.valloc(8, 4)
    SC = g.valloc(16, 4); P = g.valloc(8, 4); O = g.valloc(32, 4)
    sK, sV, sE, sF, sQ, sO = 24, 28, 32, 36, 40, 44
    sWave, sLB, sU, sW = 20, 21, 22, 23

    def STAMP(i):
        if stamp == 2:
            g.A(f"s_memrealtime s[{56+2*i}:{57+2*i}]")
    g.L.append(HEADER.rstrip())
    g.L.append(f"; @launch grid=(256,1,1) block=(256,1,1) lds={lds}")
    g.L.append('.amdgcn_target "amdgcn-amd-amdhsa--gfx950"')
    g.L += [".text", f".globl {KN}", ".p2align 8", f".type {KN},@function", f"{KN}:"]
    A("s_cmp_ge_u32 s2, 256")
    A("s_cbranch_scc1 L_done")
    A("s_load_dwordx16 s[4:19], s[0:1], 0")
    STAMP(0)
    if stamp == 1:
        A("s_memrealtime s[56:57]"); A("s_memtime s[58:59]")
    A(f"v_lshrrev_b32 v{t0}, 6, v0")
    A("v_and_b32 v0, 63, v0")
    A(f"v_lshrrev_b32 v{t0+1}, 4, v0")
    A(f"v_readfirstlane_b32 s{sWave}, v{t0}")
    A(f"v_and_b32 v{t0+2}, 15, v0")
    A(f"v_xor_b32 v{t0+3}, v{t0+2}, v{t0+1}")
    A(f"v_lshlrev_b32 v{t0+4}, 8, v{t0+1}")
    A(f"v_lshl_add_u32 v{vK}, v{t0+3}, 4, v{t0+4}")
    A(f"v_xor_b32 v{vK+1}, 64, v{vK}")
    A(f"v_xor_b32 v{vK+2}, 0x1080, v{vK}")
    A(f"v_xor_b32 v{vK+3}, 0x10c0, v{vK}")
    A(f"s_mul_i32 s{sLB}, s{sWave}, {RW}")
    if rot:
        A(f"s_mul_i32 s{sU}, s2, {rot*4}")
        A(f"s_add_u32 s{sU}, s{sU}, s{sWave}")
        A(f"s_and_b32 s{sU}, s{sU}, 31")
    else:
        A(f"s_mov_b32 s{sU}, s{sWave}")
    A(f"s_lshl_b32 s{sW}, s{sU}, 7")
    A(f"s_lshl_b32 s{sU}, s{sU}, 14")
    if swap:
        A(f"s_lshr_b32 s53, s{sWave}, 1")
        A("s_lshl_b32 s53, s53, 13")
        A(f"s_add_u32 s{sU}, s{sU}, s53")
        A("s_lshl_b32 s55, s53, 1")
        A("s_sub_u32 s54, 8192, s55")
        A("s_sub_u32 s55, 0x10000, s54")
        A("s_lshr_b32 s53, s53, 7")
    A("s_lshl_b32 s48, s2, 19")
    A("s_lshr_b32 s49, s2, 13")
    A(f"s_mov_b32 s{sK+2}, 0x80000"); A(f"s_mov_b32 s{sK+3}, 0x20000")
    A(f"s_mov_b32 s{sV+2}, 0x80000"); A(f"s_mov_b32 s{sV+3}, 0x20000")
    A(f"s_mov_b32 s{sE+2}, 0x40000"); A(f"s_mov_b32 s{sE+3}, 0x20000")
    A(f"s_mov_b32 s{sF+2}, 0x40000"); A(f"s_mov_b32 s{sF+3}, 0x20000")
    A(f"s_mov_b32 s{sQ+2}, 1024"); A(f"s_mov_b32 s{sQ+3}, 0x20000")
    A(f"s_mov_b32 s{sO+2}, 1024"); A(f"s_mov_b32 s{sO+3}, 0x20000")
    A("s_lshl_b32 s50, s2, 10")
    A(f"v_lshrrev_b32 v{t0+5}, 3, v0")
    A(f"v_and_b32 v{t0+6}, 7, v0")
    A(f"v_xor_b32 v{t0+7}, v{t0+6}, v{t0+1}")
    A(f"v_lshlrev_b32 v{t0+4}, 12, v{t0+5}")
    A(f"v_lshl_add_u32 v{vE}, v{t0+7}, 4, v{t0+4}")
    A(f"v_xor_b32 v{t0+7}, 64, v{vE}")
    for u in range(1, 8):
        src = vE if u % 2 == 0 else t0 + 7
        A(f"v_add_u32 v{vE+u}, {u*32768 - (u&3)*1024}, v{src}")
    if not swz:
        A(f"v_lshlrev_b32 v{vK}, 4, v0"); A(f"v_mov_b32 v{vK+1}, v{vK}"); A(f"v_add_u32 v{vK+2}, 0x1000, v{vK}"); A(f"v_add_u32 v{vK+3}, 0x1000, v{vK}")
        A(f"v_lshl_add_u32 v{vE}, v{t0+6}, 4, v{t0+4}")
        for u in range(1, 8): A(f"v_add_u32 v{vE+u}, {u*32768 - (u&3)*1024}, v{vE}")
    A("s_waitcnt lgkmcnt(0)")
    STAMP(1)
    A(f"s_add_u32 s{sK}, s6, s48"); A(f"s_addc_u32 s{sK+1}, s7, s49")

    units = [("K", b, s) for b in range(8) for s in range(2)] + [("V", b, s) for b in range(8) for s in range(2)]
    wts = [("E", b) for b in range(8)] + [("F", b) for b in range(8)]
    uend = {}; uhalf = {}; wend = {}
    st = dict(u=0, w=0)
    def uslot(i): return NWS * 8192 + (i % NS) * 8192
    def wslot(i): return (i % NWS) * 8192
    def issue_unit():
        i = st["u"]
        if i >= len(units): return False
        st["u"] += 1
        kind, b, s = units[i]
        srd = sK if kind == "K" else sV
        for u in range(8):
            if u % 4 == 0:
                A(f"s_add_u32 m0, s{sLB}, {uslot(i) + (u//4)*4096}")
                A("s_nop 0")
            vo = vK + (u >> 1) if kind == "K" else vV + 2 * (u >> 2) + (u & 1)
            g.vmem(f"buffer_load_dwordx4 v{vo}, s[{srd}:{srd+3}], s{sU} offen offset:{(u&3)*1024} {kvflags if (kind == 'K' or vflags is None) else vflags} lds")
            if u == 3: uhalf[i] = g.vm
        uend[i] = g.vm
        if swap: A(f"s_add_u32 s{sU}, s{sU}, s{54 if s == 0 else 55}")
        else: A(f"s_add_u32 s{sU}, s{sU}, {8192 if s == 0 else 65536 - 8192}")
        if s == 1: A(f"s_and_b32 s{sU}, s{sU}, 0x7ffff")
        return True
    def issue_w():
        i = st["w"]
        if i >= len(wts): return False
        st["w"] += 1
        kind, b = wts[i]
        srd = sE if kind == "E" else sF
        for u in range(8 if ef else 0):
            if u % 4 == 0:
                A(f"s_add_u32 m0, s{sLB}, {wslot(i) + (u//4)*4096}")
                A("s_nop 0")
            vo = (vE if kind == "E" else vF) + u
            g.vmem(f"buffer_load_dwordx4 v{vo}, s[{srd}:{srd+3}], s{sW} offen offset:{(u&3)*1024} {efflags} lds")
        wend[i] = g.vm
        A(f"s_add_u32 s{sW}, s{sW}, 512")
        A(f"s_and_b32 s{sW}, s{sW}, 0xfff")
        return True

    C("initial fill")
    issue_unit()
    A(f"s_mov_b32 s{sE}, s10"); A(f"s_mov_b32 s{sE+1}, s11")
    A(f"s_add_u32 s{sQ}, s4, s50"); A(f"s_addc_u32 s{sQ+1}, s5, 0")
    A(f"v_lshlrev_b32 v{t0+4}, 8, v{t0+2}")
    A(f"v_lshl_add_u32 v{t0+4}, v{t0+1}, 4, v{t0+4}")
    for m in range(4):
        g.vmem(f"buffer_load_dwordx4 {vr(QF+4*m,4)}, v{t0+4}, s[{sQ}:{sQ+3}], 0 offen offset:{m*64}")
    for _ in range(NWS): issue_w()
    for _ in range(NS - 1): issue_unit()
    A(f"s_add_u32 s{sV}, s8, s48"); A(f"s_addc_u32 s{sV+1}, s9, s49")
    A(f"s_mov_b32 s{sF}, s12"); A(f"s_mov_b32 s{sF+1}, s13")
    A(f"s_add_u32 s{sO}, s14, s50"); A(f"s_addc_u32 s{sO+1}, s15, 0")
    C("address registers")
    A(f"v_and_b32 v{t0+4}, 12, v{t0+2}")
    A(f"v_add_u32 v{t0+4}, v{t0+4}, v{t0+2}")
    A(f"v_lshlrev_b32 v{t0+4}, 8, v{t0+4}")
    A(f"v_lshl_add_u32 v{t0+4}, v{t0+3}, 4, v{t0+4}")
    A(f"v_add_u32 v{aK}, s{sLB}, v{t0+4}")
    for m in range(1, 4): A(f"v_xor_b32 v{aK+m}, {m*64}, v{aK}")
    A(f"v_lshrrev_b32 v{t0+4}, 1, v{t0+2}")
    A(f"v_xor_b32 v{t0+4}, v{t0+4}, v{t0+1}")
    A(f"v_lshlrev_b32 v{t0+7}, 7, v{t0+2}")
    A(f"v_lshl_add_u32 v{t0+4}, v{t0+4}, 4, v{t0+7}")
    A(f"v_add_u32 v{aE}, s{sLB}, v{t0+4}")
    if swap: A(f"v_xor_b32 v{aE}, s53, v{aE}")
    A(f"v_xor_b32 v{aE+1}, 64, v{aE}")
    A(f"v_lshlrev_b32 v{t0+4}, 1, v{t0+1}")
    A(f"v_xor_b32 v{t0+4}, v{t0+4}, v{t0+2}")
    A(f"v_lshlrev_b32 v{t0+7}, 8, v{t0+1}")
    A(f"v_lshl_add_u32 v{vV}, v{t0+4}, 4, v{t0+7}")
    A(f"v_xor_b32 v{vV+1}, 0x80, v{vV}")
    A(f"v_xor_b32 v{vV+2}, 0x1000, v{vV}")
    A(f"v_xor_b32 v{vV+3}, 0x1080, v{vV}")
    A(f"v_and_b32 v{t0+4}, 6, v{t0+5}")
    A(f"v_xor_b32 v{t0+4}, v{t0+4}, v{t0+6}")
    A(f"v_lshlrev_b32 v{t0+7}, 12, v{t0+5}")
    A(f"v_lshl_add_u32 v{vF}, v{t0+4}, 4, v{t0+7}")
    for u in range(1, 8): A(f"v_add_u32 v{vF+u}, {u*32768 - (u&3)*1024}, v{vF}")
    A(f"v_lshrrev_b32 v{t0+5}, 2, v0")
    A(f"v_bfe_u32 v{t0+6}, v0, 1, 1")
    A(f"v_and_b32 v{t0+4}, 6, v{t0+5}")
    A(f"v_or_b32 v{t0+4}, v{t0+4}, v{t0+6}")
    A(f"v_lshlrev_b32 v{t0+7}, 7, v{t0+5}")
    A(f"v_lshl_add_u32 v{t0+4}, v{t0+4}, 4, v{t0+7}")
    A(f"v_and_b32 v{t0+3}, 1, v0")
    A(f"v_lshl_add_u32 v{t0+4}, v{t0+3}, 3, v{t0+4}")
    A(f"v_add_u32 v{aF}, s{sLB}, v{t0+4}")
    if swap: A(f"v_xor_b32 v{aF}, s53, v{aF}")
    for t in range(1, 4): A(f"v_xor_b32 v{aF+t}, {t*32}, v{aF}")
    A(f"v_and_b32 v{t0+4}, 7, v{t0+5}")
    A(f"v_lshl_or_b32 v{t0+4}, v{t0+4}, 1, v{t0+6}")
    A(f"v_lshlrev_b32 v{t0+7}, 8, v{t0+5}")
    A(f"v_lshl_add_u32 v{t0+4}, v{t0+4}, 4, v{t0+7}")
    A(f"v_lshl_add_u32 v{t0+4}, v{t0+3}, 3, v{t0+4}")
    A(f"v_add_u32 v{aV}, s{sLB}, v{t0+4}")
    for t in range(1, 8): A(f"v_xor_b32 v{aV+t}, {t*32}, v{aV}")

    if not swz:
        for j in range(4): A(f"v_mov_b32 v{vV+j}, v{vK+j}")
        for u in range(8): A(f"v_mov_b32 v{vF+u}, v{vE+u}")
    MF = "v_mfma_f32_16x16x32_bf16"
    STAMP(2)
    if not compute:
        _A = g.A
        def A(s):
            if s.startswith(("ds_read", "v_mfma", "v_cvt", "s_nop 7", "s_nop 1", "s_waitcnt lgkm")): return
            _A(s)
    for b in range(8):
        C(f"K block {b}")
        wi = b
        g.wait_vm(wend[wi])
        if b == 0: STAMP(3)
        if b == 4: STAMP(4)
        if stamp == 2 and b in (0, 4): g.A("s_waitcnt lgkmcnt(0)")
        for s in range(2):
            for rt in range(4):
                A(f"ds_read_b128 {vr(WF+(s*4+rt)*4,4)}, v{aE+s} offset:{wslot(wi)+rt*2048}")
        A("s_waitcnt lgkmcnt(0)")
        issue_w()
        for s in range(2):
            ui = 2 * b + s
            g.wait_vm(uend[ui])
            for h in range(2):
                for m in range(4):
                    A(f"ds_read_b128 {vr(UF+h*16+4*m,4)}, v{aK+m} offset:{uslot(ui)+h*1024}")
            for h in range(2):
                for m in range(4):
                    A(f"s_waitcnt lgkmcnt({7-(h*4+m)})")
                    c = "0" if m == 0 else vr(SD+4*h, 4)
                    A(f"{MF} {vr(SD+4*h,4)}, {vr(UF+h*16+4*m,4)}, {vr(QF+4*m,4)}, {c}")
            if not issue_unit(): pass
            A("s_nop 7")
            for j in range(4):
                A(f"v_cvt_pk_bf16_f32 v{PB+j}, v{SD+2*j}, v{SD+2*j+1}")
            A("s_nop 1")
            for rt in range(4):
                c = "0" if (b == 0 and s == 0) else vr(SC+4*rt, 4)
                A(f"{MF} {vr(SC+4*rt,4)}, {vr(WF+(s*4+rt)*4,4)}, {vr(PB,4)}, {c}")
    C("scores: cross-wave reduction")
    STAMP(5)
    A(f"s_lshl_b32 s50, s{sWave}, 12")
    A(f"s_add_u32 s50, s50, {SCR}")
    A(f"v_lshlrev_b32 v{t0}, 4, v0")
    A(f"v_add_u32 v{t0+1}, s50, v{t0}")
    A(f"v_add_u32 v{t0}, {SCR}, v{t0}")
    A("s_nop 7")
    for rt in range(4):
        A(f"ds_write_b128 v{t0+1}, {vr(SC+4*rt,4)} offset:{rt*1024}")
    A("s_waitcnt lgkmcnt(0)")
    A("s_barrier")
    STAMP(6)
    if stamp == 2: g.A("s_waitcnt lgkmcnt(0)")
    T = WF
    assert UF == WF + 32
    for w in range(4):
        for rt in range(4):
            A(f"ds_read_b128 {vr(T+w*16+rt*4,4)}, v{t0} offset:{w*4096+rt*1024}")
    A("s_waitcnt lgkmcnt(8)")
    for i in range(16): A(f"v_add_f32 v{T+i}, v{T+i}, v{T+16+i}")
    A("s_waitcnt lgkmcnt(0)")
    for i in range(16): A(f"v_add_f32 v{T+32+i}, v{T+32+i}, v{T+48+i}")
    for i in range(16): A(f"v_add_f32 v{T+i}, v{T+i}, v{T+32+i}")
    def round_bf16(base, tmp):
        for j in range(8): A(f"v_cvt_pk_bf16_f32 v{tmp+j}, v{base+2*j}, v{base+2*j+1}")
        for j in range(8):
            A(f"v_lshlrev_b32 v{base+2*j}, 16, v{tmp+j}")
            A(f"v_and_b32 v{base+2*j+1}, 0xffff0000, v{tmp+j}")
    round_bf16(T, T+16)
    A("s_mov_b32 s51, 0x3db504f3")
    for i in range(16): A(f"v_mul_f32 v{T+i}, s51, v{T+i}")
    round_bf16(T, T+16)
    M = T + 32
    A(f"v_max3_f32 v{M}, v{T}, v{T+1}, v{T+2}")
    for i in range(3, 15, 2): A(f"v_max3_f32 v{M}, v{M}, v{T+i}, v{T+i+1}")
    A(f"v_max_f32 v{M}, v{M}, v{T+15}")
    def xlane(op):
        for sw in ("v_permlane16_swap_b32", "v_permlane32_swap_b32"):
            A(f"v_mov_b32 v{M+1}, v{M}")
            A("s_nop 1")
            A(f"{sw} v{M}, v{M+1}")
            A("s_nop 1")
            A(f"{op} v{M}, v{M}, v{M+1}")
    xlane("v_max_f32")
    A("s_mov_b32 s51, 0x3fb8aa3b")
    for i in range(16): A(f"v_sub_f32 v{T+i}, v{T+i}, v{M}")
    for i in range(16): A(f"v_mul_f32 v{T+i}, s51, v{T+i}")
    for i in range(16): A(f"v_exp_f32 v{T+i}, v{T+i}")
    A("s_nop 0")
    A(f"v_add_f32 v{M}, v{T}, v{T+1}")
    for i in range(2, 16): A(f"v_add_f32 v{M}, v{M}, v{T+i}")
    xlane("v_add_f32")
    A(f"v_rcp_f32 v{M}, v{M}")
    A("s_nop 0")
    for i in range(16): A(f"v_mul_f32 v{T+i}, v{T+i}, v{M}")
    for j in range(8): A(f"v_cvt_pk_bf16_f32 v{P+j}, v{T+2*j}, v{T+2*j+1}")
    STAMP(7)
    if stamp == 2: g.A("s_waitcnt lgkmcnt(0)")
    for b in range(8):
        C(f"V block {b}")
        wi = 8 + b
        g.wait_vm(wend[wi])
        if b == 4:
            STAMP(8)
            if stamp == 2: g.A("s_waitcnt lgkmcnt(0)")
        for t in range(4):
            for rh in range(2):
                for hp in range(2):
                    A(f"ds_read_b64_tr_b16 {vr(WF+(t*2+rh)*4+2*hp,2)}, v{aF+t} offset:{wslot(wi)+(32*rh+16*hp)*128}")
        A("s_waitcnt lgkmcnt(0)")
        for t in range(4):
            A(f"{MF} {vr(SD+4*t,4)}, {vr(WF+(t*2)*4,4)}, {vr(P,4)}, 0")
            A(f"{MF} {vr(SD+4*t,4)}, {vr(WF+(t*2+1)*4,4)}, {vr(P+4,4)}, {vr(SD+4*t,4)}")
        issue_w()
        A("s_nop 7")
        for j in range(8):
            A(f"v_cvt_pk_bf16_f32 v{PB+j}, v{SD+2*j}, v{SD+2*j+1}")
        for s in range(2):
            ui = 16 + 2 * b + s
            g.wait_vm(uhalf[ui])
            for dt in range(8):
                A(f"ds_read_b64_tr_b16 {vr(UF+4*dt,2)}, v{aV+dt} offset:{uslot(ui)}")
            g.wait_vm(uend[ui])
            for dt in range(8):
                A(f"ds_read_b64_tr_b16 {vr(UF+4*dt+2,2)}, v{aV+dt} offset:{uslot(ui)+4096}")
            for dt in range(8):
                A(f"s_waitcnt lgkmcnt({7-dt})")
                c = "0" if (b == 0 and s == 0) else vr(O+4*dt, 4)
                A(f"{MF} {vr(O+4*dt,4)}, {vr(UF+4*dt,4)}, {vr(PB+4*s,4)}, {c}")
            issue_unit()
    C("output: cross-wave reduction")
    STAMP(9)
    A(f"v_and_b32 v{t0}, 15, v0")
    A(f"v_lshlrev_b32 v{t0}, 9, v{t0}")
    A(f"v_and_b32 v{t0+1}, 48, v0")
    A(f"v_add3_u32 v{t0}, v{t0}, v{t0+1}, s{sLB}")
    A(f"s_lshl_b32 s51, s{sWave}, 6")
    A(f"v_add_u32 v{t0+2}, s51, v0")
    A(f"v_lshlrev_b32 v{t0+3}, 2, v{t0+2}")
    A(f"v_lshlrev_b32 v{t0+2}, 3, v{t0+2}")
    A(f"v_add_u32 v{t0+4}, {2*RW}, v{t0+2}")
    A("s_mov_b32 s52, 0x000f000f"); A("s_mov_b32 s53, 0x000f000f")
    A("s_nop 4")
    A("s_mov_b64 exec, s[52:53]")
    for dt in range(8):
        A(f"ds_write_b128 v{t0}, {vr(O+4*dt,4)} offset:{dt*64}")
    A("s_mov_b64 exec, -1")
    A("s_waitcnt lgkmcnt(0)")
    A("s_barrier")
    STAMP(10)
    if stamp == 2: g.A("s_waitcnt lgkmcnt(0)")
    for w in range(4):
        A(f"ds_read_b64 {vr(UF+2*w,2)}, v{t0+2+2*(w>>1)} offset:{(w&1)*RW}")
    A("s_waitcnt lgkmcnt(0)")
    A(f"v_add_f32 v{UF}, v{UF}, v{UF+2}"); A(f"v_add_f32 v{UF+1}, v{UF+1}, v{UF+3}")
    A(f"v_add_f32 v{UF+4}, v{UF+4}, v{UF+6}"); A(f"v_add_f32 v{UF+5}, v{UF+5}, v{UF+7}")
    A(f"v_add_f32 v{UF}, v{UF}, v{UF+4}"); A(f"v_add_f32 v{UF+1}, v{UF+1}, v{UF+5}")
    A(f"v_cvt_pk_bf16_f32 v{UF}, v{UF}, v{UF+1}")
    g.vmem(f"buffer_store_dword v{UF}, v{t0+3}, s[{sO}:{sO+3}], 0 offen {stflags}")
    if stamp == 2:
        A = g.A
        A("s_waitcnt vmcnt(0)")
        STAMP(11)
        A("s_mov_b32 s84, s18"); A("s_mov_b32 s85, s19"); A("s_mov_b32 s86, 0x100000"); A("s_mov_b32 s87, 0x20000")
        A("s_lshl_b32 s88, s2, 2"); A(f"s_add_u32 s88, s88, s{sWave}"); A("s_lshl_b32 s88, s88, 6")
        A("s_waitcnt lgkmcnt(0)")
        A("s_mov_b64 exec, 1")
        A(f"v_mov_b32 v{t0}, 0")
        for i in range(12):
            A(f"v_mov_b32 v{UF+i}, s{56+2*i}")
        for i in range(3):
            A(f"buffer_store_dwordx4 {vr(UF+4*i,4)}, v{t0}, s[84:87], s88 offen offset:{16*i}")
    if stamp == 1:
        A("s_waitcnt vmcnt(0)")
        A("s_memrealtime s[60:61]"); A("s_memtime s[62:63]")
        A("s_mov_b32 s64, s16"); A("s_mov_b32 s65, s17"); A("s_mov_b32 s66, 256"); A("s_mov_b32 s67, 0x20000")
        A("s_waitcnt lgkmcnt(0)")
        A("s_not_b32 s68, s56")
        A("s_sub_u32 s69, s60, s56")
        A("s_sub_u32 s70, s62, s58")
        A("s_mov_b64 exec, 1")
        A(f"v_mov_b32 v{t0}, 0")
        A(f"v_mov_b32 v{t0+1}, s60"); A(f"v_mov_b32 v{t0+2}, s68"); A(f"v_mov_b32 v{t0+3}, s69"); A(f"v_mov_b32 v{t0+4}, s70")
        A("s_not_b32 s71, s69"); A("s_not_b32 s72, s60")
        A(f"v_mov_b32 v{t0+5}, s71"); A(f"v_mov_b32 v{t0+6}, s56"); A(f"v_mov_b32 v{t0+7}, s72")
        for i in range(1, 8):
            A(f"buffer_atomic_umax v{t0+i}, v{t0}, s[64:67], 0 offen offset:{4*(i-1)}")
    g.L.append("L_done:")
    A("s_endpgm")
    nv = (g.nv + 3) // 4 * 4
    g.L += ['.section .rodata,"a"', ".p2align 6", f".amdhsa_kernel {KN}",
            f"  .amdhsa_next_free_vgpr {nv}", "  .amdhsa_next_free_sgpr 96", f"  .amdhsa_accum_offset {nv}",
            "  .amdhsa_group_segment_fixed_size 0", "  .amdhsa_kernarg_size 64", "  .amdhsa_user_sgpr_count 2",
            "  .amdhsa_user_sgpr_kernarg_segment_ptr 1", "  .amdhsa_system_sgpr_workgroup_id_x 1",
            "  .amdhsa_float_denorm_mode_32 3", ".end_amdhsa_kernel"]
    return "\n".join(g.L) + "\n", 256, 256, lds

if __name__ == "__main__":
    asm, *_ = gen()
    open("standalone__low_rank_proj_linformer__sampling.s", "w").write(asm)
```

```python
import gen1, sys
sys.path.insert(0, "bench")
from build import build
KN = gen1.KN
DESC = '''.amdhsa_kernel %s
  .amdhsa_next_free_vgpr 32
  .amdhsa_next_free_sgpr 32
  .amdhsa_accum_offset 32
  .amdhsa_group_segment_fixed_size 0
  .amdhsa_kernarg_size 64
  .amdhsa_user_sgpr_count 2
  .amdhsa_user_sgpr_kernarg_segment_ptr 1
  .amdhsa_system_sgpr_workgroup_id_x 1
.end_amdhsa_kernel
.p2align 6'''
PRE = '''.globl pre_kernel
.p2align 8
.type pre_kernel,@function
pre_kernel:
    s_getpc_b64 s[4:5]
L_pc:
    s_sub_u32 s4, s4, L_pc-%s
    s_subb_u32 s5, s5, 0
    s_mov_b32 s6, L_done-%s
    s_mov_b32 s7, 0x20000
    v_lshlrev_b32 v1, 4, v0
    buffer_load_dwordx4 v[4:7], v1, s[4:7], 0 offen
    v_add_u32 v1, 4096, v1
    buffer_load_dwordx4 v[4:7], v1, s[4:7], 0 offen
    v_add_u32 v1, 4096, v1
    buffer_load_dwordx4 v[4:7], v1, s[4:7], 0 offen
    v_add_u32 v1, 4096, v1
    buffer_load_dwordx4 v[4:7], v1, s[4:7], 0 offen
    v_add_u32 v1, 4096, v1
    buffer_load_dwordx4 v[4:7], v1, s[4:7], 0 offen
    v_add_u32 v1, 4096, v1
    buffer_load_dwordx4 v[4:7], v1, s[4:7], 0 offen
    s_waitcnt vmcnt(0)
    s_endpgm
''' % (KN, KN)
TLB = '''.globl tlb_kernel
.p2align 8
.type tlb_kernel,@function
tlb_kernel:
    s_cmp_ge_u32 s2, 256
    s_cbranch_scc1 L_tdone
    s_load_dwordx4 s[4:7], s[0:1], 8
    v_and_b32 v1, 63, v0
    v_lshlrev_b32 v1, 21, v1
    s_lshl_b32 s3, s2, 7
    s_waitcnt lgkmcnt(0)
    s_mov_b32 s8, s4
    s_mov_b32 s9, s5
    s_mov_b32 s10, 0x8000000
    s_mov_b32 s11, 0x20000
    s_mov_b32 s12, s6
    s_mov_b32 s13, s7
    s_mov_b32 s14, 0x8000000
    s_mov_b32 s15, 0x20000
    buffer_load_dword v4, v1, s[8:11], s3 offen nt
    buffer_load_dword v5, v1, s[12:15], s3 offen nt
    s_waitcnt vmcnt(0)
L_tdone:
    s_endpgm
'''
def variant(name, first, **kw):
    asm, grid, block, lds = gen1.gen(**kw)
    line = f"; @launch grid=(256,1,1) block=(256,1,1) lds={lds}"
    main = f"; @launch kernel={KN} grid=(256,1,1) block=(256,1,1) lds={lds}"
    if first == "pre":
        asm = asm.replace(line, "; @launch kernel=pre_kernel grid=(256,1,1) block=(256,1,1) lds=0\n" + main)
        asm = asm.replace('.section .rodata,"a"\n.p2align 6', PRE + '.section .rodata,"a"\n.p2align 6\n' + DESC % "pre_kernel", 1)
    if first == "tlb":
        asm = asm.replace(line, "; @launch kernel=tlb_kernel grid=(256,1,1) block=(64,1,1) lds=0\n" + main)
        asm = asm.replace('.section .rodata,"a"\n.p2align 6', TLB + '.section .rodata,"a"\n.p2align 6\n' + DESC % "tlb_kernel", 1)
    p = f"bench/{name}.s"
    open(p, "w").write(asm)
    build(p)
variant("m_pre", "pre")
variant("m_tlb", "tlb")
variant("m_st_sc01", None, stflags="sc0 sc1")
variant("m_st_nt", None, stflags="nt")
variant("m_base", None)
```

```python
import gen1, sys
sys.path.insert(0, "bench")
from build import build
from mklist2 import DESC
KN = gen1.KN
SLP = '''.globl slp_kernel
.p2align 8
.type slp_kernel,@function
slp_kernel:
    s_load_dwordx2 s[10:11], s[0:1], 56
    s_waitcnt lgkmcnt(0)
    s_load_dword s4, s[10:11], %d
    s_memrealtime s[12:13]
    s_waitcnt lgkmcnt(0)
L_sl:
    s_sleep 2
    s_memrealtime s[6:7]
    s_waitcnt lgkmcnt(0)
    s_sub_u32 s9, s6, s12
    s_cmp_gt_u32 s9, 30000
    s_cbranch_scc1 L_sd
    s_sub_u32 s8, s6, s4
    s_cmp_lt_u32 s8, %d
    s_cbranch_scc1 L_sl
L_sd:
    s_endpgm
'''
def variant(name, off, ticks, **kw):
    asm, grid, block, lds = gen1.gen(stamp=2, **kw)
    line = f"; @launch grid=(256,1,1) block=(256,1,1) lds={lds}"
    main = f"; @launch kernel={KN} grid=(256,1,1) block=(256,1,1) lds={lds}"
    sl = "; @launch kernel=slp_kernel grid=(1,1,1) block=(64,1,1) lds=0"
    asm = asm.replace(line, (main + "\n" + sl))
    asm = asm.replace('.section .rodata,"a"\n.p2align 6', SLP % (off, ticks) + '.section .rodata,"a"\n.p2align 6\n' + DESC % "slp_kernel", 1)
    p = f"bench/{name}.s"
    open(p, "w").write(asm)
    build(p)
variant("f_s0", 0, 10000)
variant("f_s1", 4, 10000)
variant("f_s3", 12, 10000)
variant("f_s5", 20, 10000)
variant("f_s11", 44, 10000)
variant("f_s11b", 44 + 64*4*131, 10000)
```
